```python
import torch

def _softmax(x, axis=-1):
    return torch.softmax(x, dim=axis)
def _gelu(x):
    return torch.nn.functional.gelu(x, approximate="tanh")
def _silu(x):
    return torch.nn.functional.silu(x)
def _sigmoid(x):
    return torch.sigmoid(x)
def _layernorm(x, axis=-1, eps=1e-5):
    m = x.mean(dim=axis, keepdim=True)
    v = x.var(dim=axis, keepdim=True, unbiased=False)
    return (x - m) / torch.sqrt(v + eps)
def _scatter_add(tgt, idx, src, axis=0):
    return tgt.clone().index_add_(axis, idx, src)
def _segment_sum(src, seg, n):
    out = torch.zeros((n,) + src.shape[1:], dtype=src.dtype)
    return out.index_add_(0, seg, src)
def _pad(x, pw):
    flat = tuple(v for pair in reversed(pw) for v in pair)
    return torch.nn.functional.pad(x, flat)

kernel_name = 'sequential_preLN__gqa_block_cached__glu_gated_geglu__decode'

def setup_inputs():

    _w = (lambda a: (lambda t: t.to(torch.bfloat16) if t.is_floating_point() else t)(torch.as_tensor(a)))
    def _A_setup():
        B, Sq, D = 1, 1, 512
        Hq, Hkv, Sk, Dh = 32, 8, 65536, 128
        assert Hq % Hkv == 0, (Hq, Hkv)
        return {
            "x": _w((lambda *s: torch.randn(*s, dtype=torch.bfloat16) * 0.05)(B, Sq, D)),
            "k_cache": _w((lambda *s: torch.randn(*s, dtype=torch.bfloat16) * 1.6)(B, Hkv, Sk, Dh)),
            "v_cache": _w((lambda *s: torch.randn(*s, dtype=torch.bfloat16) * 1.6)(B, Hkv, Sk, Dh)),
            "wq": _w((lambda *s: torch.randn(*s, dtype=torch.bfloat16) * 1.6)(D, Hq * Dh) * (D ** -0.5)),
            "wo": _w((lambda *s: torch.randn(*s, dtype=torch.bfloat16) * 1.6)(Hq * Dh, D) * ((Hq * Dh) ** -0.5)),
        }
    _A_in = _A_setup()

    def _B_setup():
        B, S, Dm, Df = 1, 1, 512, 1792
        return {
            "x": _w((lambda *s: torch.randn(*s, dtype=torch.bfloat16) * 0.05)(B, S, Dm)),
            "w_gate": _w((lambda *s: torch.randn(*s, dtype=torch.bfloat16) * 0.8)(Dm, Df) * (Dm ** -0.5)),
            "w_up": _w((lambda *s: torch.randn(*s, dtype=torch.bfloat16) * 0.8)(Dm, Df) * (Dm ** -0.5)),
            "w_down": _w((lambda *s: torch.randn(*s, dtype=torch.bfloat16) * 0.8)(Df, Dm) * (Df ** -0.5)),
        }
    _B_in = _B_setup()

    return {
        "A_x": _A_in["x"],
        "A_k_cache": _A_in["k_cache"],
        "A_v_cache": _A_in["v_cache"],
        "A_wq": _A_in["wq"],
        "A_wo": _A_in["wo"],
        "B_x": _B_in["x"],
        "B_w_gate": _B_in["w_gate"],
        "B_w_up": _B_in["w_up"],
        "B_w_down": _B_in["w_down"],
    }

def reference(A_x, A_k_cache, A_v_cache, A_wq, A_wo, B_x, B_w_gate, B_w_up, B_w_down):
    def _A_ref(x, k_cache, v_cache, wq, wo):
        B, Sq, D = x.shape
        Hq, Dh = 32, 128
        Hkv = k_cache.shape[1]
        rep = Hq // Hkv
        q = (lambda x, *d: x.permute(*d))((x @ wq).reshape(B, Sq, Hq, Dh), 0, 2, 1, 3)
        k = (lambda x, n, axis: torch.repeat_interleave(x, n, dim=axis))(k_cache, rep, axis=1)
        v = (lambda x, n, axis: torch.repeat_interleave(x, n, dim=axis))(v_cache, rep, axis=1)
        scores = torch.einsum("bhqd,bhkd->bhqk", q, k) * (Dh ** -0.5)
        p = _softmax(scores, axis=-1)
        o = torch.einsum("bhqk,bhkd->bhqd", p, v)
        return (lambda x, *d: x.permute(*d))(o, 0, 2, 1, 3).reshape(B, Sq, Hq * Dh) @ wo

    def _B_ref(x, w_gate, w_up, w_down):
        g = torch.einsum("bsd,df->bsf", x, w_gate)
        u = torch.einsum("bsd,df->bsf", x, w_up)
        h = _gelu(g) * u
        return torch.einsum("bsf,fd->bsd", h, w_down)

    x = A_x
    h = x + _A_ref(_layernorm(x, axis=-1), A_k_cache, A_v_cache, A_wq, A_wo)
    h2 = h + _B_ref(_layernorm(h, axis=-1), B_w_gate, B_w_up, B_w_down)
    return h2
```

```python
KNAME = "sequential_preLN__gqa_block_cached__glu_gated_geglu__decode_kernel"

HEADER = """; Kernarg layout for this problem (96 bytes, ptrs only, base s[0:1]):
"""

class Asm:
    def __init__(self):
        self.lines = []
        self.nlabel = 0
    def __call__(self, s=""):
        for l in s.split("\n"):
            self.lines.append("    " + l.strip() if l.strip() and not l.strip().endswith(":") else l.strip())
    def label(self, name):
        self.lines.append(name + ":")
    def newlabel(self, base="L"):
        self.nlabel += 1
        return "%s_%d" % (base, self.nlabel)
    def text(self):
        return "\n".join(self.lines) + "\n"

def wrap(body, grid, block, lds, nvgpr, nsgpr=102, accum=None, name=KNAME):
    if accum is None:
        accum = (nvgpr + 3) // 4 * 4
        if accum > 256: accum = 256
    s = HEADER
    s += "; @launch grid=(%d,1,1) block=(%d,1,1) lds=%d\n" % (grid, block, lds)
    s += '.amdgcn_target "amdgcn-amd-amdhsa--gfx950"\n.text\n.globl %s\n.p2align 8\n.type %s,@function\n%s:\n' % (name, name, name)
    s += body
    s += """.section .rodata,"a"
.p2align 6
.amdhsa_kernel %s
  .amdhsa_next_free_vgpr %d
  .amdhsa_next_free_sgpr %d
  .amdhsa_accum_offset %d
  .amdhsa_group_segment_fixed_size 0
  .amdhsa_kernarg_size 96
  .amdhsa_user_sgpr_count 2
  .amdhsa_user_sgpr_kernarg_segment_ptr 1
  .amdhsa_system_sgpr_workgroup_id_x 1
.end_amdhsa_kernel
""" % (name, nvgpr, nsgpr, accum)
    return s
```

```python
import re

TRANS = ("v_exp_f32","v_log_f32","v_rcp_f32","v_rsq_f32","v_sqrt_f32","v_sin_f32","v_cos_f32","v_rcp_iflag_f32","v_exp_f16","v_rcp_f16")
RMW = ("v_fmac_f32","v_fmac_f32_dpp","v_mac_f32","v_dot2c_f32_bf16","v_dot2c_f32_f16","v_pk_fmac_f16","v_fmac_f32_e32","v_dot2c_f32_bf16_e32")

def regs_of(tok):
    t = tok.strip()
    t = re.sub(r"^(neg|abs|sext)\((.*)\)$", r"\2", t)
    t = t.lstrip("-").strip("|")
    m = re.fullmatch(r"([vas])(\d+)", t)
    if m: return {(m.group(1), int(m.group(2)))}
    m = re.fullmatch(r"([vas])\[(\d+):(\d+)\]", t)
    if m: return {(m.group(1), i) for i in range(int(m.group(2)), int(m.group(3))+1)}
    if t == "vcc": return {("s",106),("s",107)}
    if t == "vcc_lo": return {("s",106)}
    if t == "vcc_hi": return {("s",107)}
    if t == "exec": return {("s",126),("s",127)}
    if t == "m0": return {("s",124)}
    return set()

def norm(rs):
    return rs

class Ins:
    def __init__(self, text):
        self.text = text
        s = text.split(";")[0].split("//")[0].strip()
        self.label = None; self.op = None
        self.vw = set(); self.vr = set(); self.sw = set(); self.sr = set()
        self.kind = "none"; self.nstates = 0
        self.target = None
        self.dpp = False; self.trans = False; self.mfma_passes = 0; self.srcC = set(); self.srcAB = set()
        self.wide_store_data = set(); self.opsel_dst = False
        if not s: return
        if s.endswith(":"):
            self.label = s[:-1]; self.kind = "label"; return
        if s.startswith("."):
            self.kind = "dir"; return
        parts = s.split(None, 1)
        op = parts[0]; self.op = op
        rest = parts[1] if len(parts) > 1 else ""
        ops = []; cur = ""; depth = 0
        for ch in rest:
            if ch == "[": depth += 1
            if ch == "]": depth -= 1
            if ch == "," and depth == 0: ops.append(cur.strip()); cur = ""
            else: cur += ch
        if cur.strip(): ops.append(cur.strip())
        clean = []
        mods = ""
        for o in ops:
            p = o.split(None, 1)
            clean.append(p[0] if p else "")
            if len(p) > 1: mods += " " + p[1]
        self.ops = clean; self.mods = mods
        self.nstates = 1
        V = lambda rs: {r for r in rs if r[0] in "va"}
        S = lambda rs: {r for r in rs if r[0] == "s"}
        R = [regs_of(o) for o in clean]
        def allr(lst):
            out = set()
            for x in lst: out |= x
            return out
        if op == "s_nop":
            self.kind = "salu"; self.nstates = int(clean[0], 0) + 1; return
        if op.startswith("s_cbranch") or op == "s_branch":
            self.kind = "branch"; self.target = clean[0]; return
        if op == "s_endpgm":
            self.kind = "end"; return
        if op.startswith("s_"):
            self.kind = "salu"
            if op.startswith(("s_cmp","s_waitcnt","s_barrier","s_sleep","s_setprio","s_bitcmp")):
                self.sr = S(allr(R))
            else:
                self.sw = S(R[0]) if R else set()
                self.sr = S(allr(R[1:]))
                if "saveexec" in op: self.sw |= {("s",126),("s",127)}
            return
        if op.startswith("v_mfma"):
            self.kind = "mfma"
            self.vw = V(R[0]); self.srcAB = V(R[1]) | V(R[2]); self.srcC = V(R[3]) if len(R) > 3 else set()
            self.vr = self.srcAB | self.srcC
            if "32x32" in op: self.mfma_passes = 8
            elif "4x4x4" in op: self.mfma_passes = 2
            else: self.mfma_passes = 4
            if "_f32_16x16x4_f32" in op or "16x16x4f32" in op: self.mfma_passes = 8
            return
        if op.startswith("v_"):
            self.kind = "valu"
            self.dpp = ("quad_perm" in mods or "row_" in mods or "wave_" in mods or op.endswith("_dpp"))
            self.trans = op.replace("_e32","").replace("_e64","") in TRANS
            if "dst_sel" in mods or "op_sel" in mods: self.opsel_dst = True
            base = op.replace("_e32","").replace("_e64","").replace("_dpp","").replace("_sdwa","")
            if base.startswith("v_cmp"):
                self.sw = S(R[0]); self.vr = V(allr(R[1:])); self.sr = S(allr(R[1:]))
                if base.startswith("v_cmpx"): self.sw |= {("s",126),("s",127)}
            elif base in ("v_readlane_b32","v_readfirstlane_b32"):
                self.sw = S(R[0]); self.vr = V(R[1]); self.sr = S(allr(R[2:]))
                self.kind = "readlane"
            elif base.startswith("v_permlane") and "swap" in base:
                self.vw = V(R[0]) | V(R[1]); self.vr = set(self.vw); self.kind = "permlane"
            elif base in ("v_add_co_u32","v_sub_co_u32","v_subrev_co_u32"):
                self.vw = V(R[0]); self.sw = S(R[1]); self.vr = V(allr(R[2:])); self.sr = S(allr(R[2:]))
            elif base in ("v_addc_co_u32","v_subb_co_u32"):
                self.vw = V(R[0]); self.sw = S(R[1]); self.vr = V(allr(R[2:])); self.sr = S(allr(R[2:]))
            else:
                self.vw = V(R[0]); self.vr = V(allr(R[1:])); self.sr = S(allr(R[1:]))
                if base in RMW or base == "v_writelane_b32": self.vr |= self.vw
                if base == "v_cndmask_b32" and len(clean) == 3: self.sr |= {("s",106),("s",107)}
            return
        if op.startswith(("buffer_","global_","flat_")):
            self.kind = "vmem"
            if op.startswith(("buffer_wbl2","buffer_inv")): return
            isbuf = op.startswith("buffer_")
            store = "store" in op
            atomic = "atomic" in op
            lds = " lds" in (" " + mods)
            if isbuf:
                if lds and not store:
                    self.vr = V(R[0]); self.sr = S(allr(R[1:]))
                elif store:
                    self.vr = V(R[0]) | V(R[1]); self.sr = S(allr(R[2:]))
                    if "x4" in op or "x3" in op: self.wide_store_data = V(R[0])
                elif atomic:
                    self.vr = V(R[0]) | V(R[1]); self.sr = S(allr(R[2:]))
                    if "sc0" in mods: self.vw = V(R[0])
                else:
                    self.vw = V(R[0]); self.vr = V(R[1]); self.sr = S(allr(R[2:]))
            else:
                if store:
                    self.vr = V(R[0]) | V(R[1]); self.sr = S(allr(R[2:]))
                    if "x4" in op or "x3" in op: self.wide_store_data = V(R[1])
                elif atomic:
                    if "sc0" in mods:
                        self.vw = V(R[0]); self.vr = V(R[1]) | V(R[2]); self.sr = S(allr(R[3:]))
                    else:
                        self.vr = V(R[0]) | V(R[1]); self.sr = S(allr(R[2:]))
                else:
                    self.vw = V(R[0]); self.vr = V(R[1]); self.sr = S(allr(R[2:]))
            return
        if op.startswith("ds_"):
            self.kind = "ds"
            if op.startswith(("ds_read","ds_bpermute","ds_permute","ds_swizzle")):
                self.vw = V(R[0]); self.vr = V(allr(R[1:]))
            else:
                self.vr = V(allr(R))
            return
        raise ValueError("unknown instr: " + text)

VALU_KINDS = ("valu","readlane","permlane")

def need(prod, cons):
    n = 0
    pv = prod.kind in VALU_KINDS
    if pv:
        ov = prod.vw & cons.vr
        if ov:
            if cons.kind == "valu" and cons.dpp: n = max(n, 2)
            if cons.kind == "permlane": n = max(n, 2)
            if cons.kind == "readlane": n = max(n, 1)
            if cons.kind == "mfma": n = max(n, 2)
            if prod.trans and cons.kind in VALU_KINDS: n = max(n, 1)
            if prod.opsel_dst and cons.kind in VALU_KINDS: n = max(n, 1)
        os_ = prod.sw & cons.sr
        if os_:
            if cons.kind in ("valu","permlane"): n = max(n, 2)
            if cons.kind == "readlane": n = max(n, 4)
            if cons.kind == "vmem": n = max(n, 5)
        if prod.sw & {("s",126),("s",127)}:
            if cons.kind in VALU_KINDS and cons.dpp: n = max(n, 5)
            if cons.kind in ("readlane","permlane","mfma"): n = max(n, 4)
    if pv and prod.op.startswith("v_dot"):
        same = cons.op is not None and cons.op.replace("_e32","") == prod.op.replace("_e32","")
        if prod.vw & (cons.vr | cons.vw):
            if same:
                ab = set()
                for o in cons.ops[1:3]: ab |= {r for r in regs_of(o) if r[0] in "va"}
                if prod.vw & ab: n = max(n, 3)
            else:
                n = max(n, 3)
    if prod.kind == "mfma":
        P = prod.mfma_passes
        tab_valu = {2:5, 4:8, 8:12, 16:20}[P]
        if cons.kind == "mfma":
            if prod.vw & cons.srcAB: n = max(n, tab_valu)
            ovc = prod.vw & cons.srcC
            if ovc:
                if cons.srcC == prod.vw and cons.mfma_passes == P:
                    n = max(n, 2 if P == 2 else 0)
                else:
                    n = max(n, {2:4, 4:6, 8:10, 16:18}[P])
            if (prod.vw & cons.vw) and not ovc: n = max(n, tab_valu)
        else:
            if prod.vw & (cons.vr | cons.vw): n = max(n, tab_valu)
            if cons.kind in VALU_KINDS and (prod.srcC & cons.vw): n = max(n, {2:1, 4:3, 8:7, 16:15}[P])
    if prod.kind == "vmem" and prod.wide_store_data:
        if prod.wide_store_data & cons.vw:
            n = max(n, 2 if cons.kind in VALU_KINDS else 1)
    return n

MAXW = 20

def insert_nops(lines, verbose=False):
    ins = [Ins(l) for l in lines]
    changed = True
    total = 0
    while changed:
        changed = False
        labels = {x.label: i for i, x in enumerate(ins) if x.label}
        preds = [[] for _ in ins]
        for i, x in enumerate(ins):
            if i + 1 < len(ins) and not (x.kind == "end" or (x.kind == "branch" and x.op == "s_branch")):
                preds[i+1].append(i)
            if x.kind == "branch" and x.target in labels:
                preds[labels[x.target]].append(i)
        for i, c in enumerate(ins):
            if c.kind in ("none","label","dir","salu","branch","end") : continue
            worst = 0; who = None
            stack = [(p, 0) for p in preds[i]]
            seen = {}
            while stack:
                j, dist = stack.pop()
                if dist >= MAXW: continue
                if j in seen and seen[j] <= dist: continue
                seen[j] = dist
                p = ins[j]
                if p.nstates:
                    r = need(p, c)
                    if r - dist > worst: worst = r - dist; who = p
                nd = dist + p.nstates
                for q in preds[j]: stack.append((q, nd))
            if worst > 0:
                nop = Ins("    s_nop %d" % (worst - 1))
                nop.text = "    s_nop %d" % (worst-1)
                ins.insert(i, nop)
                total += 1
                if verbose: print("nop %d before: %s   (after %s)" % (worst, c.text.strip(), who.text.strip()))
                changed = True
                break
    return [x.text for x in ins], total
```

```python
import sys, math, struct
from asmlib import *
from hazard import insert_nops

def f2u(x): return struct.unpack("<I", struct.pack("<f", x))[0]

WS_GEN  = 0x0
WS_CTR  = 0x1000
WS_Q    = 0x10000
WS_AO   = 0x40000
WS_AML  = 0xC0000
WS_B    = 0xD0000
WS_D    = 0xE0000
WS_STAMP= 0x100000
WS_SIZE = 0x200000

L_QP   = 0
L_QB   = 1024
L_OW   = 2048
L_ML   = 10496
L_OS   = 10752
L_GU   = 12800
L_HB   = 13312
L_WT   = 13568
L_SIZE = 14592

CSCALE = (128.0 ** -0.5) * math.log2(math.e)
MAXPOLL = 400000

class G:
    def __init__(self, NS=24, NBS=4, diag=False, nt_kv=True):
        self.a = Asm(); self.NS = NS; self.NBS = NBS; self.diag = diag
        self.nt = " nt" if nt_kv else ""
        self.vmq = []
    def stamp(self, k):
        if not self.diag: return
        a = self.a
        a("s_memrealtime s[%d:%d]" % (70+2*k, 71+2*k))
    def allreduce(self, op, v, t, rows_only=False):
        a = self.a
        for r in (1,2,4,8):
            a("%s_dpp %s, %s, %s row_ror:%d row_mask:0xf bank_mask:0xf" % (op, v, v, v, r))
        if rows_only: return
        self.xrow(op, v, t)
    def xrow(self, op, v, t, steps=(16,32)):
        a = self.a
        for s in steps:
            a("v_mov_b32 %s, %s" % (t, v))
            a("v_permlane%d_swap_b32 %s, %s" % (s, t, v))
            a("%s %s, %s, %s" % (op, v, v, t))
    def srd(self, d, base, size):
        a = self.a
        a("s_mov_b32 s%d, s%d" % (d, base)); a("s_and_b32 s%d, s%d, 0xffff" % (d+1, base+1))
        a("s_mov_b32 s%d, 0x%x" % (d+2, size)); a("s_mov_b32 s%d, 0x20000" % (d+3))
    def tag4(self, regs):
        for r in regs: self.a("v_bfi_b32 v%d, s68, v23, v%d" % (r, r))
    def poll(self, name, issue, regs, pre=None):
        a = self.a
        a("s_mov_b32 s62, %d" % MAXPOLL)
        a.label("L_poll_%s" % name)
        issue()
        a("s_waitcnt vmcnt(0)")
        a("v_xor_b32 v56, v%d, v23" % regs[0])
        for r in regs[1:]:
            a("v_bitop3_b32 v56, v%d, v23, v56 bitop3:0xBE" % r)
        a("v_and_b32 v56, 0xfff, v56")
        a("v_cmp_ne_u32 vcc, 0, v56")
        a("s_cbranch_vccz L_pollok_%s" % name)
        a("s_sub_u32 s62, s62, 1")
        a("s_cmp_eq_u32 s62, 0")
        a("s_cbranch_scc0 L_poll_%s" % name)
        a.label("L_pollok_%s" % name)

    def issue_unit(self, b, sreg, tag):
        a = self.a
        for i in range(4):
            a("buffer_load_dwordx4 a[%d:%d], v2, s[8:11], %s offen offset:%d%s" % (32*b+4*i, 32*b+4*i+3, sreg, 1024*i, self.nt)); self.vmq.append(tag)
        for i in range(4):
            a("buffer_load_dwordx4 a[%d:%d], v3, s[12:15], %s offen offset:%d%s" % (32*b+16+4*i, 32*b+16+4*i+3, sreg, 1024*i, self.nt)); self.vmq.append(tag)
    def wait_tag(self, tags):
        idx = max([i for i,t in enumerate(self.vmq) if t in tags], default=-1)
        n = len(self.vmq) - 1 - idx
        self.vmq = self.vmq[idx+1:]
        self.a("s_waitcnt vmcnt(%d)" % min(n, 63))
    def compute_unit(self, b):
        a = self.a
        for i in range(4):
            a("v_mfma_f32_16x16x32_bf16 v[%d:%d], a[%d:%d], v[4:7], 0" % (24+4*i, 27+4*i, 32*b+4*i, 32*b+4*i+3))
        for r in range(4):
            for i in range(4):
                if r == 0: a("v_mov_b32_dpp v%d, v%d quad_perm:[0,0,0,0] row_mask:0xf bank_mask:0xf" % (40+i, 24+4*i))
                else: a("v_add_f32_dpp v%d, v%d, v%d quad_perm:[%d,%d,%d,%d] row_mask:0xf bank_mask:0xf" % (40+i, 24+4*i+r, 40+i, r, r, r, r))
        a("v_max3_f32 v56, v40, v41, v42")
        a("v_max3_f32 v56, v56, v43, v10")
        self.xrow("v_max_f32", "v56", "v57", steps=(32,16))
        a("v_sub_f32 v59, v10, v56")
        a("v_mul_f32 v58, s67, v56")
        a("v_mul_f32 v59, s66, v59")
        a("v_mov_b32 v10, v56")
        a("v_exp_f32 v59, v59")
        for i in range(4): a("v_fma_f32 v%d, v%d, s66, v58" % (44+i, 40+i))
        for i in range(4): a("v_exp_f32 v%d, v%d" % (44+i, 44+i))
        for r in range(8): a("v_mul_f32 v%d, v%d, v59" % (12+r, 12+r))
        for i in range(4): a("v_cvt_pk_bf16_f32 v%d, v%d, v%d" % (60+i, 44+i, 44+i))
        a("v_add_f32 v56, v44, v45"); a("v_add_f32 v57, v46, v47")
        for i in range(4):
            a("v_and_b32 v%d, v%d, v8" % (48+2*i, 60+i)); a("v_and_b32 v%d, v%d, v9" % (49+2*i, 60+i))
        a("v_add_f32 v56, v56, v57")
        a("v_fma_f32 v11, v11, v59, v56")
        for i in range(4):
            a("v_mfma_f32_16x16x16_bf16 v[12:15], a[%d:%d], v[%d:%d], v[12:15]" % (32*b+16+4*i, 32*b+16+4*i+1, 48+2*i, 49+2*i))
            a("v_mfma_f32_16x16x16_bf16 v[16:19], a[%d:%d], v[%d:%d], v[16:19]" % (32*b+16+4*i+2, 32*b+16+4*i+3, 48+2*i, 49+2*i))
    def atomic_ticket(self, treg, tag):
        a = self.a
        a("v_mov_b32 v%d, 1" % treg)
        a("s_mov_b64 exec, 1")
        a("buffer_atomic_add v%d, v22, s[16:19], 0 offen sc0" % treg); self.vmq.append(tag)
        a("s_mov_b64 exec, -1")

    def build(self):
        a = self.a; NS = self.NS; NBS = self.NBS
        a("s_cmp_ge_u32 s2, 256"); a("s_cbranch_scc1 L_end")
        a("s_load_dwordx16 s[36:51], s[0:1], 0")
        a("s_load_dwordx8 s[52:59], s[0:1], 64")
        if self.diag:
            for k in range(70, 87): a("s_mov_b32 s%d, 0" % k)
        self.stamp(0)
        a("v_lshrrev_b32 v56, 6, v0"); a("v_mov_b32 v1, v0"); a("v_readfirstlane_b32 s3, v56"); a("v_and_b32 v0, 63, v0")
        a("v_bfe_u32 v56, v0, 2, 2"); a("v_lshlrev_b32 v2, 8, v56")
        a("v_lshrrev_b32 v57, 4, v0"); a("v_lshl_add_u32 v2, v57, 6, v2")
        a("v_and_b32 v58, 3, v0"); a("v_lshl_add_u32 v2, v58, 4, v2")
        a("v_lshlrev_b32 v3, 4, v0")
        a("v_mov_b32 v8, 0"); a("v_mov_b32 v9, 0")
        a("v_mov_b32 v59, 0xffff"); a("v_mov_b32 v60, 0xffff0000")
        a("v_cmp_eq_u32 vcc, 0, v58"); a("v_cndmask_b32 v8, v8, v59, vcc")
        a("v_cmp_eq_u32 vcc, 1, v58"); a("v_cndmask_b32 v8, v8, v60, vcc")
        a("v_cmp_eq_u32 vcc, 2, v58"); a("v_cndmask_b32 v9, v9, v59, vcc")
        a("v_cmp_eq_u32 vcc, 3, v58"); a("v_cndmask_b32 v9, v9, v60, vcc")
        a("s_lshr_b32 s4, s2, 3"); a("s_and_b32 s4, s4, 7")
        a("s_lshr_b32 s5, s2, 6"); a("s_lshl_b32 s5, s5, 3"); a("s_and_b32 s28, s2, 7"); a("s_add_u32 s5, s5, s28")
        a("s_mov_b32 s66, 0x%x" % f2u(CSCALE)); a("s_mov_b32 s67, 0x%x" % f2u(-CSCALE)); a("s_mov_b32 s68, 0xfff")
        a("v_lshrrev_b32 v61, 3, v0")
        a("v_and_b32 v62, 7, v0")
        a("v_lshlrev_b32 v63, 13, v61"); a("v_lshl_add_u32 v63, v62, 4, v63")
        a("v_lshlrev_b32 v64, 1, v61")
        a("s_waitcnt lgkmcnt(0)")
        a("s_load_dword s7, s[58:59], 0")
        self.srd(20, 36, 1024)
        self.srd(24, 42, 0x400000)
        a("s_and_b32 s28, s2, 3"); a("s_lshl_b32 s28, s28, 7"); a("s_lshl_b32 s29, s3, 5"); a("s_add_u32 s28, s28, s29")
        a("s_lshl_b32 s29, s28, 1")
        a("s_lshl_b32 s30, s28, 13"); a("s_lshr_b32 s31, s2, 2"); a("s_lshl_b32 s31, s31, 7"); a("s_add_u32 s30, s30, s31")
        a("buffer_load_dwordx4 v[72:75], v3, s[20:23], 0 offen")
        for i in range(4):
            a("buffer_load_ushort v%d, v64, s[20:23], s29 offen offset:%d" % (76+i, 16*i))
        for i in range(4):
            a("buffer_load_dwordx4 v[%d:%d], v63, s[24:27], s30 offen nt" % (80+4*i, 83+4*i))
            if i < 3: a("s_add_u32 s30, s30, 65536")
        self.srd(8, 38, 0x8000000); self.srd(12, 40, 0x8000000); self.srd(16, 58, WS_SIZE)
        a("s_lshl_b32 s60, s4, 24")
        a("s_mov_b32 s63, s60")
        a("s_lshl_b32 s28, s5, 2"); a("s_add_u32 s28, s28, s3"); a("s_lshl_b32 s28, s28, 12"); a("s_add_u32 s60, s60, s28")
        a("s_mov_b32 s61, %d" % (128*4096))
        a("s_add_u32 s28, s3, s5"); a("s_and_b32 s28, s28, 3")
        a("s_lshl_b32 s29, s28, 12"); a("s_add_u32 s63, s63, s29"); a("s_add_u32 s63, s63, %d" % (NS*128*4096))
        a("s_lshl_b32 s29, s4, 2"); a("s_add_u32 s29, s29, s28"); a("s_lshl_b32 s29, s29, 8"); a("s_add_u32 s29, s29, %d" % WS_CTR)
        a("v_mov_b32 v22, s29")
        a("s_cmp_eq_u32 s3, 0"); a("s_cbranch_scc1 L_noprefetch")
        sv = list(self.vmq)
        for b in range(NBS):
            self.issue_unit(b, "s60", "S%d" % b); a("s_add_u32 s60, s60, s61")
        a("s_waitcnt vmcnt(%d)" % (8*NBS))
        a("s_branch L_qln")
        a.label("L_noprefetch")
        a("s_waitcnt vmcnt(0)")
        a.label("L_qln")
        for j in range(4):
            a("v_lshlrev_b32 v%d, 16, v%d" % (24+2*j, 72+j)); a("v_and_b32 v%d, 0xffff0000, v%d" % (25+2*j, 72+j))
        a("v_add_f32 v56, v24, v25")
        for j in range(2, 8): a("v_add_f32 v56, v56, v%d" % (24+j))
        self.allreduce("v_add_f32", "v56", "v57")
        a("v_mul_f32 v56, 0x%x, v56" % f2u(1.0/512))
        for j in range(8): a("v_sub_f32 v%d, v%d, v56" % (24+j, 24+j))
        a("v_mul_f32 v57, v24, v24")
        for j in range(1, 8): a("v_fma_f32 v57, v%d, v%d, v57" % (24+j, 24+j))
        self.allreduce("v_add_f32", "v57", "v58")
        a("v_mov_b32 v58, 0x%x" % f2u(1e-5))
        a("v_mul_f32 v57, 0x%x, v57" % f2u(1.0/512))
        a("v_add_f32 v57, v57, v58")
        a("v_rsq_f32 v57, v57")
        for i in range(4):
            a("v_lshlrev_b32 v%d, 16, v%d" % (76+i, 76+i))
            a("v_sub_f32 v%d, v%d, v56" % (76+i, 76+i))
            a("v_mul_f32 v%d, v%d, v57" % (76+i, 76+i))
        a("v_cvt_pk_bf16_f32 v76, v76, v77"); a("v_cvt_pk_bf16_f32 v77, v78, v79")
        a("s_mov_b32 s28, 0x05040100"); a("s_mov_b32 s29, 0x07060302")
        for j in range(8): a("v_mov_b32 v%d, 0" % (24+j))
        for pr in range(2):
            for j in range(4):
                A = 80+8*pr+j; B = 84+8*pr+j
                a("v_perm_b32 v56, v%d, v%d, s28" % (B, A)); a("v_perm_b32 v57, v%d, v%d, s29" % (B, A))
                a("v_dot2c_f32_bf16 v%d, v56, v%d" % (24+2*j, 76+pr)); a("v_dot2c_f32_bf16 v%d, v57, v%d" % (25+2*j, 76+pr))
        for j in range(4):
            a("v_permlane32_swap_b32 v%d, v%d" % (24+j, 28+j)); a("v_add_f32 v%d, v%d, v%d" % (24+j, 24+j, 28+j))
        for j in range(2):
            a("v_permlane16_swap_b32 v%d, v%d" % (24+j, 26+j)); a("v_add_f32 v%d, v%d, v%d" % (24+j, 24+j, 26+j))
        for j in range(2):
            a("v_add_f32_dpp v%d, v%d, v%d row_ror:8 row_mask:0xf bank_mask:0xf" % (24+j, 24+j, 24+j))
        a("v_lshrrev_b32 v56, 4, v0")
        a("v_lshrrev_b32 v57, 1, v56"); a("v_and_b32 v56, 1, v56")
        a("v_lshlrev_b32 v58, 5, v62")
        a("v_lshl_add_u32 v58, v57, 4, v58"); a("v_lshl_add_u32 v58, v56, 3, v58")
        a("s_lshl_b32 s28, s3, 8"); a("v_add_u32 v58, s28, v58")
        a("ds_write_b64 v58, v[24:25] offset:%d" % L_QP)
        a("s_waitcnt lgkmcnt(0)")
        a("s_barrier")
        a("s_add_u32 s7, s7, 1"); a("s_and_b32 s6, s7, 0xfff"); a("v_mov_b32 v23, s6")
        a("s_cmp_eq_u32 s3, 0"); a("s_cbranch_scc0 L_qwait")
        a("s_and_b32 s28, s2, 31"); a("s_cmp_eq_u32 s28, 0"); a("s_cbranch_scc0 L_noinit")
        a("s_lshr_b32 s28, s2, 5"); a("s_lshl_b32 s28, s28, 10"); a("s_add_u32 s28, s28, %d" % WS_CTR)
        a("v_lshlrev_b32 v56, 8, v0"); a("v_add_u32 v56, s28, v56"); a("v_mov_b32 v57, 0")
        a("s_mov_b64 exec, 15")
        a("buffer_atomic_swap v57, v56, s[16:19], 0 offen sc0")
        a("s_mov_b64 exec, -1")
        a("s_waitcnt vmcnt(0)")
        a.label("L_noinit")
        a("v_lshlrev_b32 v56, 4, v0")
        for w in range(4):
            a("ds_read_b128 v[%d:%d], v56 offset:%d" % (24+4*w, 27+4*w, L_QP+256*w))
        a("s_waitcnt lgkmcnt(0)")
        for j in range(4):
            a("v_add_f32 v%d, v%d, v%d" % (24+j, 24+j, 28+j)); a("v_add_f32 v%d, v%d, v%d" % (32+j, 32+j, 36+j))
        for j in range(4): a("v_add_f32 v%d, v%d, v%d" % (24+j, 24+j, 32+j))
        self.tag4(range(24, 28))
        a("s_lshr_b32 s28, s2, 5"); a("s_lshl_b32 s28, s28, 13")
        a("s_and_b32 s29, s2, 3"); a("s_lshl_b32 s29, s29, 11"); a("s_add_u32 s28, s28, s29")
        a("s_lshr_b32 s29, s2, 2"); a("s_and_b32 s29, s29, 7"); a("s_lshl_b32 s29, s29, 8"); a("s_add_u32 s28, s28, s29")
        a("s_add_u32 s28, s28, %d" % WS_Q)
        a("s_mov_b64 exec, 0xffff")
        a("buffer_store_dwordx4 v[24:27], v56, s[16:19], s28 offen sc1")
        a("s_mov_b64 exec, -1")
        a("s_lshl_b32 s28, s4, 13"); a("s_add_u32 s28, s28, %d" % WS_Q)
        a("v_mov_b32 v64, v56")
        def issue_q2():
            for ks in range(4):
                a("s_add_u32 s29, s28, %d" % (2048*ks))
                for hf in range(2):
                    r = 180 + 8*ks + 4*hf
                    a("buffer_load_dwordx4 v[%d:%d], v64, s[16:19], s29 offen offset:%d sc1" % (r, r+3, 1024*hf))
        self.poll("q", issue_q2, list(range(180, 212)))
        for j in range(8):
            a("v_add_f32 v%d, v%d, v%d" % (180+j, 180+j, 188+j)); a("v_add_f32 v%d, v%d, v%d" % (196+j, 196+j, 204+j))
        for j in range(8): a("v_add_f32 v%d, v%d, v%d" % (180+j, 180+j, 196+j))
        a("v_cvt_pk_bf16_f32 v24, v180, v181"); a("v_cvt_pk_bf16_f32 v25, v182, v183")
        a("v_cvt_pk_bf16_f32 v26, v184, v185"); a("v_cvt_pk_bf16_f32 v27, v186, v187")
        a("v_lshlrev_b32 v57, 3, v0")
        a("ds_write_b64 v57, v[24:25] offset:%d" % L_QB)
        a("ds_write_b64 v57, v[26:27] offset:%d" % (L_QB+512))
        a("s_waitcnt lgkmcnt(0)")
        a.label("L_qwait")
        a("s_barrier")
        a("ds_read_b128 v[4:7], v2 offset:%d" % L_QB)
        a("v_mov_b32 v10, 0x%x" % f2u(-1e30)); a("v_mov_b32 v11, 0")
        for r in range(8): a("v_mov_b32 v%d, 0" % (12+r))
        a("v_mov_b32 v56, 0"); a("v_mov_b32 v57, 0"); a("v_lshlrev_b32 v58, 3, v1")
        a("ds_write_b64 v58, v[56:57] offset:%d" % L_OS)
        a("v_lshlrev_b32 v58, 1, v1"); a("v_and_b32 v58, 0x1fc, v58")
        a("ds_write_b32 v58, v56 offset:%d" % L_GU)
        a("s_cmp_eq_u32 s3, 0"); a("s_cbranch_scc0 L_haveprefetch")
        self.vmq = []
        for b in range(NBS):
            self.issue_unit(b, "s60", "S%d" % b); a("s_add_u32 s60, s60, s61")
        a.label("L_haveprefetch")
        a("s_waitcnt lgkmcnt(0)")
        self.stamp(1)
        nloop = (NS - NBS)//NBS
        assert (NS - NBS) % NBS == 0 and nloop >= 1
        a("s_mov_b32 s62, %d" % nloop)
        a.label("L_sloop")
        for b in range(NBS):
            self.wait_tag(["S%d" % b]); self.compute_unit(b)
            self.issue_unit(b, "s60", "S%d" % b); a("s_add_u32 s60, s60, s61")
        a("s_sub_u32 s62, s62, 1"); a("s_cmp_lg_u32 s62, 0"); a("s_cbranch_scc1 L_sloop")
        self.stamp(2)
        self.role_ids()
        self.atomic_ticket(20, "A0")
        self.issue_weights()
        for b in range(NBS-1):
            self.wait_tag(["S%d" % b]); self.compute_unit(b)
        X = NBS-1; Y = 0
        lim = (4096 - NS*128)//4
        a.label("L_dloop")
        for (p, q, tcur, tnext) in ((X,Y,20,21),(Y,X,21,20)):
            a("s_waitcnt vmcnt(0)"); self.vmq = []
            a("v_readfirstlane_b32 s28, v%d" % tcur)
            a("s_cmp_ge_u32 s28, %d" % lim)
            a("s_cbranch_scc1 L_fin_%d" % p)
            self.atomic_ticket(tnext, "A")
            a("s_lshl_b32 s28, s28, 14"); a("s_add_u32 s28, s28, s63")
            self.issue_unit(q, "s28", "D")
            self.compute_unit(p)
        a("s_branch L_dloop")
        a.label("L_fin_%d" % X); self.compute_unit(X); a("s_branch L_done")
        a.label("L_fin_%d" % Y); self.compute_unit(Y)
        a.label("L_done")
        self.stamp(3)
        self.stage0()
        self.stamp(4)
        self.roles()
        a.label("L_exit")
        if self.diag: self.write_stamps()
        a.label("L_end"); a("s_endpgm")

    def role_ids(self):
        a = self.a
        a("s_mov_b32 s65, 0")
        a("s_cmp_lt_u32 s2, 64"); a("s_cselect_b32 s65, 1, s65")
        a("s_sub_u32 s28, s2, 64")
        a("s_and_b32 s29, s28, 7"); a("s_lshr_b32 s30, s28, 4"); a("s_lshl_b32 s30, s30, 3"); a("s_add_u32 s29, s29, s30"); a("s_lshl_b32 s29, s29, 1")
        a("s_lshr_b32 s30, s28, 3"); a("s_and_b32 s30, s30, 1"); a("s_add_u32 s69, s29, s30")
        a("s_cmp_lt_u32 s28, 64"); a("s_cselect_b32 s30, 1, 0")
        a("s_cmp_lt_u32 s69, 56"); a("s_cselect_b32 s31, s30, 0")
        a("s_cmp_eq_u32 s31, 1"); a("s_cselect_b32 s65, 2, s65")
        a("s_sub_u32 s28, s2, 128"); a("s_cmp_lt_u32 s28, 32"); a("s_cselect_b32 s65, 3, s65")

    def issue_weights(self):
        a = self.a
        a("s_cmp_eq_u32 s65, 1"); a("s_cbranch_scc0 L_w_notwo")
        self.srd(20, 44, 0x400000)
        a("v_lshrrev_b32 v56, 2, v0"); a("v_lshlrev_b32 v56, 14, v56"); a("v_and_b32 v57, 3, v0"); a("v_lshl_add_u32 v56, v57, 4, v56")
        a("s_lshr_b32 s28, s2, 2"); a("s_lshl_b32 s28, s28, 18"); a("s_and_b32 s29, s2, 3"); a("s_lshl_b32 s29, s29, 8"); a("s_add_u32 s28, s28, s29")
        a("s_lshl_b32 s29, s3, 6"); a("s_add_u32 s28, s28, s29")
        for i in range(16):
            a("buffer_load_dwordx4 v[%d:%d], v56, s[20:23], s28 offen offset:%d nt" % (80+4*i, 83+4*i, 1024*(i%4)))
            if i % 4 == 3 and i < 15: a("s_add_u32 s28, s28, 4096")
        a("s_branch L_w_done")
        a.label("L_w_notwo")
        a("s_cmp_eq_u32 s65, 2"); a("s_cbranch_scc0 L_w_done")
        self.srd(20, 48, 512*1792*2); self.srd(24, 50, 512*1792*2)
        a("v_lshrrev_b32 v56, 2, v0"); a("v_mul_u32_u24 v56, %d, v56" % (8*3584)); a("v_and_b32 v57, 3, v0"); a("v_lshl_add_u32 v56, v57, 4, v56")
        a("s_mul_i32 s28, s3, %d" % (128*3584)); a("s_lshl_b32 s29, s69, 6"); a("s_add_u32 s28, s28, s29")
        for i in range(8):
            a("buffer_load_dwordx4 v[%d:%d], v56, s[20:23], s28 offen nt" % (80+4*i, 83+4*i))
            a("buffer_load_dwordx4 v[%d:%d], v56, s[24:27], s28 offen nt" % (112+4*i, 115+4*i))
            if i < 7: a("s_add_u32 s28, s28, 3584")
        self.srd(20, 52, 1792*512*2)
        a("v_lshrrev_b32 v56, 4, v0"); a("v_lshlrev_b32 v56, 13, v56"); a("v_and_b32 v57, 15, v0"); a("v_lshl_add_u32 v56, v57, 4, v56")
        a("s_lshl_b32 s28, s69, 15"); a("s_lshl_b32 s29, s3, 8"); a("s_add_u32 s28, s28, s29")
        for i in range(8):
            a("buffer_load_dwordx4 v[%d:%d], v56, s[20:23], s28 offen offset:%d nt" % (144+4*i, 147+4*i, 1024*(i%4)))
            if i == 3: a("s_add_u32 s28, s28, 4096")
        a.label("L_w_done")

    def stage0(self):
        a = self.a
        a("s_waitcnt vmcnt(0)")
        self.xrow("v_add_f32", "v11", "v56")
        a("v_bfe_u32 v56, v0, 2, 2"); a("v_mul_u32_u24 v57, 528, v56")
        a("v_lshrrev_b32 v58, 4, v0"); a("v_lshl_add_u32 v57, v58, 7, v57")
        a("v_and_b32 v58, 3, v0"); a("v_lshl_add_u32 v57, v58, 2, v57")
        a("s_mul_i32 s28, s3, 2112"); a("v_add_u32 v57, s28, v57")
        for half in range(2):
            for r in range(4):
                a("ds_write_b32 v57, v%d offset:%d" % (12+4*half+r, L_OW + 32*r + 16*half))
        a("v_lshlrev_b32 v58, 5, v56"); a("s_lshl_b32 s28, s3, 3"); a("v_add_u32 v58, s28, v58")
        a("v_mov_b32 v60, v10"); a("v_mov_b32 v61, v11")
        a("s_mov_b64 exec, 0x1111")
        a("ds_write_b64 v58, v[60:61] offset:%d" % L_ML)
        a("s_mov_b64 exec, -1")
        a("s_waitcnt lgkmcnt(0)")
        a("s_barrier")
        a("s_cmp_lt_u32 s3, 2"); a("s_cbranch_scc0 L_s0_done")
        a("v_lshrrev_b32 v56, 5, v1"); a("v_and_b32 v57, 31, v1")
        a("v_mul_u32_u24 v58, 528, v56"); a("v_lshl_add_u32 v58, v57, 4, v58")
        for w in range(4):
            a("ds_read_b128 v[%d:%d], v58 offset:%d" % (24+4*w, 27+4*w, L_OW + 2112*w))
        a("v_lshlrev_b32 v59, 5, v56")
        a("ds_read_b128 v[40:43], v59 offset:%d" % L_ML); a("ds_read_b128 v[44:47], v59 offset:%d" % (L_ML+16))
        a("s_waitcnt lgkmcnt(0)")
        a("v_max3_f32 v60, v40, v42, v44"); a("v_max_f32 v60, v60, v46"); a("v_and_b32 v60, 0xfffff000, v60")
        for k, m in enumerate((40,42,44,46)):
            a("v_sub_f32 v%d, v%d, v60" % (m, m)); a("v_mul_f32 v%d, s66, v%d" % (m, m)); a("v_exp_f32 v%d, v%d" % (m, m))
        a("v_mul_f32 v61, v40, v41"); a("v_fma_f32 v61, v42, v43, v61"); a("v_fma_f32 v61, v44, v45, v61"); a("v_fma_f32 v61, v46, v47, v61")
        for j in range(4):
            a("v_mul_f32 v%d, v%d, v40" % (24+j, 24+j))
            a("v_fma_f32 v%d, v%d, v42, v%d" % (24+j, 28+j, 24+j))
            a("v_fma_f32 v%d, v%d, v44, v%d" % (24+j, 32+j, 24+j))
            a("v_fma_f32 v%d, v%d, v46, v%d" % (24+j, 36+j, 24+j))
        self.tag4(range(24, 28))
        a("s_lshl_b32 s28, s4, 5"); a("s_add_u32 s28, s28, s5"); a("s_lshl_b32 s29, s28, 11"); a("s_add_u32 s29, s29, %d" % WS_AO)
        a("v_lshlrev_b32 v58, 4, v1")
        a("buffer_store_dwordx4 v[24:27], v58, s[16:19], s29 offen sc1")
        a("v_mov_b32 v62, v60"); a("v_mov_b32 v63, v61")
        self.tag4(range(60, 64))
        a("s_lshl_b32 s29, s28, 7"); a("s_add_u32 s29, s29, %d" % WS_AML)
        a("v_lshlrev_b32 v58, 4, v56")
        a("s_mov_b32 exec_lo, 1"); a("s_mov_b32 exec_hi, 1")
        a("buffer_store_dwordx4 v[60:63], v58, s[16:19], s29 offen sc1")
        a("s_mov_b64 exec, -1")
        a.label("L_s0_done")

    def repack(self, base, npairs, spare):
        a = self.a; m = {}
        free = spare
        for p in range(npairs):
            for j in range(4):
                A = base + 8*p + j; B = base + 8*p + 4 + j
                a("v_perm_b32 v%d, v%d, v%d, s28" % (free, B, A))
                a("v_perm_b32 v%d, v%d, v%d, s29" % (B, B, A))
                m[(p, 2*j)] = free; m[(p, 2*j+1)] = B
                free = A
        return m, free

    def roles(self):
        a = self.a
        a("s_cmp_eq_u32 s65, 1"); a("s_cbranch_scc1 L_role_wo")
        a("s_cmp_eq_u32 s65, 2"); a("s_cbranch_scc1 L_role_ffn")
        a("s_cmp_eq_u32 s65, 3"); a("s_cbranch_scc1 L_role_red")
        a("s_branch L_exit")
        self.role_wo(); self.role_ffn(); self.role_red()

    def role_wo(self):
        a = self.a
        a.label("L_role_wo")
        a("s_mov_b32 s28, 0x05040100"); a("s_mov_b32 s29, 0x07060302")
        m, _ = self.repack(80, 8, 176)
        a("s_lshr_b32 s30, s2, 2")
        a("s_lshr_b32 s31, s30, 1")
        a("s_and_b32 s32, s30, 1")
        a("s_lshl_b32 s33, s31, 16"); a("s_lshl_b32 s34, s3, 14"); a("s_add_u32 s33, s33, s34"); a("s_lshl_b32 s34, s32, 10"); a("s_add_u32 s33, s33, s34")
        a("s_add_u32 s33, s33, %d" % WS_AO)
        a("v_lshlrev_b32 v64, 4, v0")
        a("v_and_b32 v57, 31, v0"); a("v_lshlrev_b32 v65, 7, v57"); a("v_lshrrev_b32 v57, 5, v0"); a("v_lshl_add_u32 v65, v57, 4, v65")
        a("s_lshl_b32 s34, s31, 12"); a("s_lshl_b32 s35, s32, 5"); a("s_add_u32 s34, s34, s35"); a("s_add_u32 s34, s34, %d" % WS_AML)
        def issue():
            a("buffer_load_dwordx4 v[212:215], v65, s[16:19], s34 offen sc1")
            for i in range(8):
                if i % 2 == 0: a("s_add_u32 s35, s33, %d" % (2048*i))
                a("buffer_load_dwordx4 v[%d:%d], v64, s[16:19], s35 offen offset:%d sc1" % (180+4*i, 183+4*i, 2048*(i%2)))
        self.poll("A", issue, list(range(180, 216)))
        self.stamp(5)
        a("v_and_b32 v212, 0xfffff000, v212")
        a("v_mov_b32 v56, v212")
        for r in (1,2,4,8): a("v_max_f32_dpp v56, v56, v56 row_ror:%d row_mask:0xf bank_mask:0xf" % r)
        self.xrow("v_max_f32", "v56", "v57", steps=(16,))
        a("v_sub_f32 v56, v212, v56"); a("v_mul_f32 v56, s66, v56"); a("v_exp_f32 v56, v56")
        a("v_mul_f32 v58, v56, v213")
        for r in (1,2,4,8): a("v_add_f32_dpp v58, v58, v58 row_ror:%d row_mask:0xf bank_mask:0xf" % r)
        self.xrow("v_add_f32", "v58", "v57", steps=(16,))
        a("v_rcp_f32 v58, v58"); a("v_mul_f32 v56, v56, v58")
        a("s_lshl_b32 s35, s3, 8"); a("v_lshlrev_b32 v57, 2, v0"); a("v_add_u32 v57, s35, v57")
        a("ds_write_b32 v57, v56 offset:%d" % L_WT)
        a("v_lshrrev_b32 v57, 5, v0"); a("v_lshlrev_b32 v57, 7, v57"); a("s_mul_i32 s35, s3, 288"); a("v_add_u32 v57, s35, v57")
        a("s_waitcnt lgkmcnt(0)")
        a("ds_read_b128 v[24:27], v57 offset:%d" % L_WT); a("ds_read_b128 v[28:31], v57 offset:%d" % (L_WT+16))
        a("s_waitcnt lgkmcnt(0)")
        for j in range(4): a("v_mul_f32 v%d, v%d, v24" % (32+j, 180+j))
        for i in range(1, 8):
            for j in range(4): a("v_fma_f32 v%d, v%d, v%d, v%d" % (32+j, 180+4*i+j, 24+i, 32+j))
        a("v_lshlrev_b32 v57, 2, v0")
        for j in range(4): a("ds_add_f32 v57, v%d offset:%d" % (32+j, L_OS + 256*j))
        a("s_waitcnt lgkmcnt(0)")
        a("s_barrier")
        a("v_lshrrev_b32 v57, 2, v0"); a("v_lshlrev_b32 v57, 4, v57")
        for j in range(4): a("ds_read_b128 v[%d:%d], v57 offset:%d" % (24+4*j, 27+4*j, L_OS + 256*j))
        for j in range(8): a("v_mov_b32 v%d, 0" % (48+j))
        a("s_waitcnt lgkmcnt(0)")
        for t in range(4):
            a("v_cvt_pk_bf16_f32 v%d, v%d, v%d" % (40+2*t, 24+t, 28+t))
            a("v_cvt_pk_bf16_f32 v%d, v%d, v%d" % (41+2*t, 32+t, 36+t))
        for p in range(8):
            for c in range(8): a("v_dot2c_f32_bf16 v%d, v%d, v%d" % (48+c, m[(p, c)], 40+p))
        for j in range(4):
            a("v_permlane32_swap_b32 v%d, v%d" % (48+j, 52+j)); a("v_add_f32 v%d, v%d, v%d" % (48+j, 48+j, 52+j))
        for j in range(4):
            a("v_mov_b32 v%d, v%d" % (52+j, 48+j))
        for j in range(4):
            a("v_permlane16_swap_b32 v%d, v%d" % (52+j, 48+j)); a("v_add_f32 v%d, v%d, v%d" % (48+j, 48+j, 52+j))
        for r in (8, 4):
            for j in range(4): a("v_add_f32_dpp v%d, v%d, v%d row_ror:%d row_mask:0xf bank_mask:0xf" % (48+j, 48+j, 48+j, r))
        self.tag4(range(48, 52))
        a("v_and_b32 v57, 3, v0"); a("v_lshlrev_b32 v57, 5, v57"); a("v_lshrrev_b32 v58, 5, v0"); a("v_lshl_add_u32 v57, v58, 4, v57")
        a("s_lshl_b32 s33, s30, 11"); a("s_and_b32 s34, s2, 3"); a("s_lshl_b32 s34, s34, 9"); a("s_add_u32 s33, s33, s34")
        a("s_lshl_b32 s34, s3, 7"); a("s_add_u32 s33, s33, s34"); a("s_add_u32 s33, s33, %d" % WS_B)
        a("s_mov_b32 exec_lo, 15"); a("s_mov_b32 exec_hi, 15")
        a("buffer_store_dwordx4 v[48:51], v57, s[16:19], s33 offen sc1")
        a("s_mov_b64 exec, -1")
        self.stamp(6)
        a("s_branch L_exit")

    def ffn_gemv_up(self, mg, mu):
        a = self.a
        for j in range(16): a("v_mov_b32 v%d, 0" % (24+j))
        a("v_mov_b32 v60, 0"); a("v_mov_b32 v61, 0"); a("v_mov_b32 v62, 0x3f803f80")
        for p in range(4):
            a("v_dot2c_f32_bf16 v60, v%d, v62" % (40+p)); a("v_dot2c_f32_bf16 v61, v%d, v%d" % (40+p, 40+p))
            for c in range(8):
                a("v_dot2c_f32_bf16 v%d, v%d, v%d" % (24+c, mg[(p, c)], 40+p))
                a("v_dot2c_f32_bf16 v%d, v%d, v%d" % (32+c, mu[(p, c)], 40+p))
        for j in range(8):
            a("v_permlane32_swap_b32 v%d, v%d" % (24+j, 32+j)); a("v_add_f32 v%d, v%d, v%d" % (24+j, 24+j, 32+j))
        a("v_permlane32_swap_b32 v60, v61"); a("v_add_f32 v60, v60, v61")
        for j in range(4):
            a("v_permlane16_swap_b32 v%d, v%d" % (24+j, 28+j)); a("v_add_f32 v%d, v%d, v%d" % (24+j, 24+j, 28+j))
        self.xrow("v_add_f32", "v60", "v61", steps=(16,))
        for r in (8, 4):
            for j in range(4): a("v_add_f32_dpp v%d, v%d, v%d row_ror:%d row_mask:0xf bank_mask:0xf" % (24+j, 24+j, 24+j, r))
            a("v_add_f32_dpp v60, v60, v60 row_ror:%d row_mask:0xf bank_mask:0xf" % r)
        a("v_lshrrev_b32 v56, 5, v0"); a("v_lshlrev_b32 v56, 7, v56")
        a("v_and_b32 v57, 3, v0"); a("v_lshl_add_u32 v56, v57, 5, v56")
        a("v_bfe_u32 v57, v0, 4, 1"); a("v_lshl_add_u32 v56, v57, 4, v56")
        a("s_mov_b32 exec_lo, 0x000f000f"); a("s_mov_b32 exec_hi, 0x000f000f")
        for j in range(4): a("ds_add_f32 v56, v%d offset:%d" % (24+j, L_GU + 4*j))
        a("v_lshrrev_b32 v57, 5, v0"); a("v_lshlrev_b32 v57, 2, v57")
        a("s_mov_b32 exec_lo, 1"); a("s_mov_b32 exec_hi, 1")
        a("ds_add_f32 v57, v60 offset:%d" % (L_GU + 256))
        a("s_mov_b64 exec, -1")
        a("s_waitcnt lgkmcnt(0)")
        a("s_barrier")

    def role_ffn(self):
        a = self.a
        a.label("L_role_ffn")
        a("s_mov_b32 s28, 0x05040100"); a("s_mov_b32 s29, 0x07060302")
        mg, sp = self.repack(80, 4, 176)
        mu, sp = self.repack(112, 4, sp)
        md, sp = self.repack(144, 4, sp)
        for p in range(4): a("v_mov_b32 v%d, 0x3f803f80" % (40+p))
        self.ffn_gemv_up(mg, mu)
        a("v_and_b32 v56, 31, v0"); a("v_lshlrev_b32 v66, 2, v56")
        a("ds_read_b32 v70, v66 offset:%d" % L_GU); a("ds_read_b32 v71, v66 offset:%d" % (L_GU+128))
        a("s_waitcnt lgkmcnt(0)")
        a("s_barrier")
        a("v_mov_b32 v56, 0"); a("v_lshlrev_b32 v58, 1, v1"); a("v_and_b32 v58, 0x1fc, v58")
        a("ds_write_b32 v58, v56 offset:%d" % L_GU)
        a("s_waitcnt lgkmcnt(0)")
        a("s_barrier")
        self.srd(20, 36, 1024)
        a("s_and_b32 s30, s3, 1"); a("s_lshl_b32 s30, s30, 6"); a("v_add_u32 v67, s30, v0")
        a("v_lshlrev_b32 v57, 3, v67")
        a("buffer_load_dwordx2 v[68:69], v57, s[20:23], 0 offen")
        a("v_lshlrev_b32 v64, 4, v67")
        a("s_lshr_b32 s31, s3, 1"); a("s_lshl_b32 s33, s31, 14"); a("s_add_u32 s33, s33, %d" % WS_B)
        def issue():
            for i in range(8):
                if i % 2 == 0: a("s_add_u32 s35, s33, %d" % (2048*i))
                a("buffer_load_dwordx4 v[%d:%d], v64, s[16:19], s35 offen offset:%d sc1" % (180+4*i, 183+4*i, 2048*(i%2)))
        self.poll("B", issue, list(range(180, 212)))
        self.stamp(5)
        for j in range(4):
            a("v_add_f32 v%d, v%d, v%d" % (180+j, 180+j, 184+j)); a("v_add_f32 v%d, v%d, v%d" % (188+j, 188+j, 192+j))
            a("v_add_f32 v%d, v%d, v%d" % (196+j, 196+j, 200+j)); a("v_add_f32 v%d, v%d, v%d" % (204+j, 204+j, 208+j))
        for j in range(4):
            a("v_add_f32 v%d, v%d, v%d" % (180+j, 180+j, 188+j)); a("v_add_f32 v%d, v%d, v%d" % (196+j, 196+j, 204+j))
        for j in range(4): a("v_add_f32 v%d, v%d, v%d" % (180+j, 180+j, 196+j))
        a("s_cmp_eq_u32 s31, 0"); a("s_cbranch_scc0 L_ffn_nox")
        a("v_lshlrev_b32 v56, 16, v68"); a("v_add_f32 v180, v180, v56"); a("v_and_b32 v56, 0xffff0000, v68"); a("v_add_f32 v181, v181, v56")
        a("v_lshlrev_b32 v56, 16, v69"); a("v_add_f32 v182, v182, v56"); a("v_and_b32 v56, 0xffff0000, v69"); a("v_add_f32 v183, v183, v56")
        a.label("L_ffn_nox")
        a("v_lshlrev_b32 v57, 2, v67")
        for j in range(4): a("ds_add_f32 v57, v%d offset:%d" % (180+j, L_OS + 512*j))
        a("s_waitcnt lgkmcnt(0)")
        a("s_barrier")
        a("v_lshrrev_b32 v57, 2, v0"); a("v_lshlrev_b32 v57, 3, v57"); a("s_lshl_b32 s30, s3, 7"); a("v_add_u32 v57, s30, v57")
        for j in range(4): a("ds_read_b64 v[%d:%d], v57 offset:%d" % (48+2*j, 49+2*j, L_OS + 512*j))
        a("s_waitcnt lgkmcnt(0)")
        a("v_cvt_pk_bf16_f32 v40, v48, v50"); a("v_cvt_pk_bf16_f32 v41, v52, v54")
        a("v_cvt_pk_bf16_f32 v42, v49, v51"); a("v_cvt_pk_bf16_f32 v43, v53, v55")
        self.ffn_gemv_up(mg, mu)
        a("ds_read_b32 v24, v66 offset:%d" % L_GU); a("ds_read_b32 v25, v66 offset:%d" % (L_GU+128))
        a("v_mov_b32 v57, 0"); a("ds_read_b64 v[26:27], v57 offset:%d" % (L_GU+256))
        a("s_waitcnt lgkmcnt(0)")
        a("v_mul_f32 v26, 0x%x, v26" % f2u(1.0/512))
        a("v_mul_f32 v27, 0x%x, v27" % f2u(1.0/512))
        a("v_fma_f32 v27, -v26, v26, v27")
        a("v_add_f32 v27, 0x%x, v27" % f2u(1e-5)); a("v_rsq_f32 v27, v27")
        a("v_fma_f32 v24, -v26, v70, v24"); a("v_fma_f32 v25, -v26, v71, v25")
        a("v_mul_f32 v24, v24, v27"); a("v_mul_f32 v25, v25, v27")
        a("v_cvt_pk_bf16_f32 v28, v24, v25")
        a("v_lshlrev_b32 v24, 16, v28"); a("v_and_b32 v25, 0xffff0000, v28")
        K0 = math.sqrt(2.0/math.pi); K1 = 0.044715
        a("v_mul_f32 v29, v24, v24"); a("v_mul_f32 v29, 0x%x, v29" % f2u(K1)); a("v_add_f32 v29, 1.0, v29"); a("v_mul_f32 v29, v29, v24")
        a("v_mul_f32 v29, 0x%x, v29" % f2u(-2.0*K0*math.log2(math.e))); a("v_exp_f32 v29, v29"); a("v_add_f32 v29, 1.0, v29"); a("v_rcp_f32 v29, v29")
        a("v_mul_f32 v29, v29, v24")
        a("v_cvt_pk_bf16_f32 v29, v29, v29"); a("v_lshlrev_b32 v29, 16, v29")
        a("v_mul_f32 v29, v29, v25"); a("v_cvt_pk_bf16_f32 v29, v29, v29")
        a("v_and_b32 v56, 31, v0"); a("v_lshlrev_b32 v56, 1, v56"); a("s_lshl_b32 s30, s3, 6"); a("v_add_u32 v56, s30, v56")
        a("ds_write_b16 v56, v29 offset:%d" % L_HB)
        a("v_lshrrev_b32 v57, 4, v0"); a("v_lshlrev_b32 v57, 4, v57"); a("v_add_u32 v57, s30, v57")
        a("s_waitcnt lgkmcnt(0)")
        a("ds_read_b128 v[40:43], v57 offset:%d" % L_HB)
        for j in range(8): a("v_mov_b32 v%d, 0" % (48+j))
        a("v_and_b32 v56, 15, v0"); a("v_lshlrev_b32 v56, 1, v56"); a("v_lshrrev_b32 v57, 5, v0"); a("v_add_u32 v56, v56, v57")
        a("s_lshl_b32 s30, s3, 5"); a("v_add_u32 v56, s30, v56"); a("v_lshlrev_b32 v57, 2, v56")
        for j in range(4): a("ds_read_b32 v%d, v57 offset:%d" % (60+j, L_OS + 512*j))
        a("s_waitcnt lgkmcnt(0)")
        for p in range(4):
            for c in range(8): a("v_dot2c_f32_bf16 v%d, v%d, v%d" % (48+c, md[(p, c)], 40+p))
        for j in range(4):
            a("v_permlane32_swap_b32 v%d, v%d" % (48+j, 52+j)); a("v_add_f32 v%d, v%d, v%d" % (48+j, 48+j, 52+j))
        for j in range(4): a("v_mov_b32 v%d, v%d" % (52+j, 48+j))
        for j in range(4):
            a("v_permlane16_swap_b32 v%d, v%d" % (52+j, 48+j)); a("v_add_f32 v%d, v%d, v%d" % (48+j, 48+j, 52+j))
        a("s_cmp_eq_u32 s69, 0"); a("s_cbranch_scc0 L_ffn_nores")
        a("v_cvt_pk_bf16_f32 v60, v60, v61"); a("v_cvt_pk_bf16_f32 v62, v62, v63")
        a("v_and_b32 v61, 0xffff0000, v60"); a("v_lshlrev_b32 v60, 16, v60"); a("v_and_b32 v63, 0xffff0000, v62"); a("v_lshlrev_b32 v62, 16, v62")
        for j in range(4): a("v_add_f32 v%d, v%d, v%d" % (48+j, 48+j, 60+j))
        a.label("L_ffn_nores")
        self.tag4(range(48, 52))
        a("v_lshlrev_b32 v57, 4, v56")
        a("s_lshl_b32 s33, s69, 11"); a("s_add_u32 s33, s33, %d" % WS_D)
        a("s_mov_b32 exec_lo, 0x0000ffff"); a("s_mov_b32 exec_hi, 0x0000ffff")
        a("buffer_store_dwordx4 v[48:51], v57, s[16:19], s33 offen sc1")
        a("s_mov_b64 exec, -1")
        self.stamp(6)
        a("s_branch L_exit")

    def role_red(self):
        a = self.a
        a.label("L_role_red")
        a("s_cmp_eq_u32 s3, 0"); a("s_cbranch_scc0 L_exit")
        a("s_sub_u32 s30, s2, 128")
        a("v_lshrrev_b32 v56, 2, v0"); a("v_lshlrev_b32 v64, 11, v56"); a("v_and_b32 v57, 3, v0"); a("v_lshl_add_u32 v64, v57, 4, v64")
        a("s_lshl_b32 s33, s30, 6"); a("s_add_u32 s33, s33, %d" % WS_D)
        for j in range(4): a("v_mov_b32 v%d, v23" % (192+j))
        def issue():
            for i in range(4):
                a("s_add_u32 s35, s33, %d" % (32768*i))
                if i == 3: a("s_mov_b32 exec_hi, 0")
                a("buffer_load_dwordx4 v[%d:%d], v64, s[16:19], s35 offen sc1" % (180+4*i, 183+4*i))
                if i == 3: a("s_mov_b64 exec, -1")
        self.poll("D", issue, list(range(180, 196)))
        self.stamp(5)
        for j in range(4):
            a("v_add_f32 v%d, v%d, v%d" % (180+j, 180+j, 184+j)); a("v_add_f32 v%d, v%d, v%d" % (188+j, 188+j, 192+j))
        for j in range(4): a("v_add_f32 v%d, v%d, v%d" % (180+j, 180+j, 188+j))
        for r in (4, 8):
            for j in range(4): a("v_add_f32_dpp v%d, v%d, v%d row_ror:%d row_mask:0xf bank_mask:0xf" % (180+j, 180+j, 180+j, r))
        for s in (16, 32):
            for j in range(4): a("v_mov_b32 v%d, v%d" % (184+j, 180+j))
            for j in range(4):
                a("v_permlane%d_swap_b32 v%d, v%d" % (s, 184+j, 180+j)); a("v_add_f32 v%d, v%d, v%d" % (180+j, 180+j, 184+j))
        a("v_cvt_pk_bf16_f32 v184, v180, v181"); a("v_cvt_pk_bf16_f32 v185, v182, v183")
        self.srd(20, 54, 1024)
        a("v_lshlrev_b32 v57, 3, v0"); a("s_lshl_b32 s33, s30, 5")
        a("s_mov_b64 exec, 15")
        a("buffer_store_dwordx2 v[184:185], v57, s[20:23], s33 offen")
        a("s_mov_b64 exec, -1")
        a("s_cmp_eq_u32 s30, 0"); a("s_cbranch_scc0 L_red_nogen")
        a("v_mov_b32 v56, s7"); a("v_mov_b32 v57, 0")
        a("s_mov_b64 exec, 1")
        a("buffer_store_dword v56, v57, s[16:19], 0 offen sc1")
        a("s_mov_b64 exec, -1")
        a.label("L_red_nogen")
        self.stamp(6)
        a("s_branch L_exit")

    def write_stamps(self):
        a = self.a
        a("s_waitcnt vmcnt(0) lgkmcnt(0)")
        a("s_memrealtime s[84:85]")
        a("s_getreg_b32 s86, hwreg(HW_REG_XCC_ID)")
        a("s_waitcnt lgkmcnt(0)")
        a("s_lshl_b32 s28, s2, 2"); a("s_add_u32 s28, s28, s3"); a("s_lshl_b32 s28, s28, 6"); a("s_add_u32 s28, s28, %d" % WS_STAMP)
        for k in range(8): a("v_mov_b32 v%d, s%d" % (24+k, 70+2*k))
        a("v_mov_b32 v32, s86"); a("v_mov_b32 v33, s65"); a("v_mov_b32 v34, 0"); a("v_mov_b32 v35, 0")
        a("v_mov_b32 v56, 0")
        a("s_mov_b64 exec, 1")
        for k in range(3):
            a("buffer_store_dwordx4 v[%d:%d], v56, s[16:19], s28 offen offset:%d" % (24+4*k, 27+4*k, 16*k))
        a("s_mov_b64 exec, -1")

def generate(**kw):
    g = G(**kw); g.build()
    lines, n = insert_nops(g.a.lines)
    return wrap("\n".join(lines) + "\n", 256, 256, L_SIZE, 256 + 32*g.NBS, nsgpr=102, accum=256)

if __name__ == "__main__":
    import os
    os.makedirs("gen", exist_ok=True)
    open("gen/main.s", "w").write(generate())
    open("gen/main_diag.s", "w").write(generate(diag=True))
    print("ok")
```
